```python
import torch

def _softmax(x, axis=-1):
    return torch.softmax(x, dim=axis)
def _gelu(x):
    return torch.nn.functional.gelu(x, approximate="tanh")
def _silu(x):
    return torch.nn.functional.silu(x)
def _sigmoid(x):
    return torch.sigmoid(x)
def _layernorm(x, axis=-1, eps=1e-5):
    m = x.mean(dim=axis, keepdim=True)
    v = x.var(dim=axis, keepdim=True, unbiased=False)
    return (x - m) / torch.sqrt(v + eps)
def _scatter_add(tgt, idx, src, axis=0):
    return tgt.clone().index_add_(axis, idx, src)
def _segment_sum(src, seg, n):
    out = torch.zeros((n,) + src.shape[1:], dtype=src.dtype)
    return out.index_add_(0, seg, src)
def _pad(x, pw):
    flat = tuple(v for pair in reversed(pw) for v in pair)
    return torch.nn.functional.pad(x, flat)

kernel_name = 'sequential_preLN__sliding_block_cached__geglu_ffn__decode'

def setup_inputs():

    _w = (lambda a: (lambda t: t.to(torch.bfloat16) if t.is_floating_point() else t)(torch.as_tensor(a)))
    def _A_setup():
        B, Sq, D = 2, 1, 512
        Hq, Hkv, Sk, Dh = 32, 32, 4096, 128
        assert Hq % Hkv == 0, (Hq, Hkv)
        return {
            "x": _w((lambda *s: torch.randn(*s, dtype=torch.bfloat16) * 0.05)(B, Sq, D)),
            "k_cache": _w((lambda *s: torch.randn(*s, dtype=torch.bfloat16) * 3.2)(B, Hkv, Sk, Dh)),
            "v_cache": _w((lambda *s: torch.randn(*s, dtype=torch.bfloat16) * 0.4)(B, Hkv, Sk, Dh)),
            "wq": _w((lambda *s: torch.randn(*s, dtype=torch.bfloat16) * 3.2)(D, Hq * Dh) * (D ** -0.5)),
            "wo": _w((lambda *s: torch.randn(*s, dtype=torch.bfloat16) * 0.4)(Hq * Dh, D) * ((Hq * Dh) ** -0.5)),
        }
    _A_in = _A_setup()

    def _B_setup():
        B, S, D, F = 2, 1, 512, 1376
        return {
            "x": _w((lambda *s: torch.randn(*s, dtype=torch.bfloat16) * 0.05)(B, S, D)),
            "w_gate": _w((lambda *s: torch.randn(*s, dtype=torch.bfloat16) * 0.05)(D, F)),
            "w_up": _w((lambda *s: torch.randn(*s, dtype=torch.bfloat16) * 0.05)(D, F)),
            "w_down": _w((lambda *s: torch.randn(*s, dtype=torch.bfloat16) * 0.05)(F, D)),
        }
    _B_in = _B_setup()

    return {
        "A_x": _A_in["x"],
        "A_k_cache": _A_in["k_cache"],
        "A_v_cache": _A_in["v_cache"],
        "A_wq": _A_in["wq"],
        "A_wo": _A_in["wo"],
        "B_x": _B_in["x"],
        "B_w_gate": _B_in["w_gate"],
        "B_w_up": _B_in["w_up"],
        "B_w_down": _B_in["w_down"],
    }

def reference(A_x, A_k_cache, A_v_cache, A_wq, A_wo, B_x, B_w_gate, B_w_up, B_w_down):
    def _A_ref(x, k_cache, v_cache, wq, wo):
        B, Sq, D = x.shape
        Hq, Dh = 32, 128
        Hkv, Sk = k_cache.shape[1], k_cache.shape[2]
        W = min(4096, max(256, Sk // 4))
        rep = Hq // Hkv
        q = (lambda x, *d: x.permute(*d))((x @ wq).reshape(B, Sq, Hq, Dh), 0, 2, 1, 3)
        k = (lambda x, n, axis: torch.repeat_interleave(x, n, dim=axis))(k_cache[:, :, Sk - W:, :], rep, axis=1)
        v = (lambda x, n, axis: torch.repeat_interleave(x, n, dim=axis))(v_cache[:, :, Sk - W:, :], rep, axis=1)
        scores = torch.einsum("bhqd,bhkd->bhqk", q, k) * (Dh ** -0.5)
        p = _softmax(scores, axis=-1)
        o = torch.einsum("bhqk,bhkd->bhqd", p, v)
        return (lambda x, *d: x.permute(*d))(o, 0, 2, 1, 3).reshape(B, Sq, Hq * Dh) @ wo

    def _B_ref(x, w_gate, w_up, w_down):
        return (_gelu(x @ w_gate) * (x @ w_up)) @ w_down

    x = A_x
    h = x + _A_ref(_layernorm(x, axis=-1), A_k_cache, A_v_cache, A_wq, A_wo)
    h2 = h + _B_ref(_layernorm(h, axis=-1), B_w_gate, B_w_up, B_w_down)
    return h2
```

```python
NAME = 'sequential_preLN__sliding_block_cached__geglu_ffn__decode'
HEADER_COMMENT = open('cdna_kernels/' + NAME + '.s.ref').read().split('; Override launch')[0]

class Asm:
    def __init__(self):
        self.l = []
    def __call__(self, s=''):
        for line in s.strip('\n').split('\n'):
            self.l.append(line if line.strip().endswith(':') else '    ' + line.strip())
    def text(self):
        return '\n'.join(self.l) + '\n'

DESIGN = """;
"""


def tidy(body):
    out = []
    for line in body.split('\n'):
        s = line.strip()
        if s:
            out.append(s if s.endswith(':') and not s.startswith(';') else '    ' + s)
    return '\n'.join(out) + '\n'


def wrap(body, grid, block, lds, vgpr, sgpr=102, accum=None, design=False):
    accum = accum if accum is not None else min(256, (vgpr + 3) // 4 * 4)
    body = tidy(body)
    return (HEADER_COMMENT + (DESIGN if design else '') +
        f'; @launch grid=({grid},1,1) block=({block},1,1) lds={lds}\n'
        '.amdgcn_target "amdgcn-amd-amdhsa--gfx950"\n.text\n'
        f'.globl {NAME}_kernel\n.p2align 8\n.type {NAME}_kernel,@function\n{NAME}_kernel:\n'
        + body +
        '.section .rodata,"a"\n.p2align 6\n'
        f'.amdhsa_kernel {NAME}_kernel\n'
        f'  .amdhsa_next_free_vgpr {vgpr}\n  .amdhsa_next_free_sgpr {sgpr}\n  .amdhsa_accum_offset {accum}\n'
        '  .amdhsa_group_segment_fixed_size 0\n  .amdhsa_kernarg_size 96\n  .amdhsa_user_sgpr_count 2\n'
        '  .amdhsa_user_sgpr_kernarg_segment_ptr 1\n  .amdhsa_system_sgpr_workgroup_id_x 1\n'
        '.end_amdhsa_kernel\n')
```

```python
import sys, json, struct
from asmlib import *


def f2u(x):
    return struct.unpack('<I', struct.pack('<f', x))[0]


LOG2E = 1.4426950408889634
SCALE = 128 ** -0.5
GELU_K0 = -2.0 * (2.0 / 3.141592653589793) ** 0.5 * LOG2E

WS_E, WS_QP, WS_OP, WS_AP, WS_DP = 0, 0x10000, 0x50000, 0x80000, 0x90000
OPREC = 1024
WS_END = WS_DP + 22 * 16384
WS_LOCAL = 0x100000
WS_FLG = WS_LOCAL + WS_AP
WS_ALL = WS_FLG + 4096
WS_PROBE = 0xF0000
STAMP = 0x8000000

L_XN = 0
L_P = 512
L_OW = 2560
L_PART = 0
L_ST = 8192
L_HB = 8448
L_AB = 10496
L_Q = 11776
L_ML = 12032
L_ONES = 12096
L_CNT = 12224
L_ZERO = 12256
L_PART2 = 12288
L_W = 16384
LDS_BYTES = L_W + 98304

DPP = 'row_mask:0xf bank_mask:0xf'
PEND = 60


def gen(n0=344, pf_at=1, pfpol='', mimic=True, pol='nt', stamps=False, cap=1 << 16, prefetch=True, fpol=None,
        wpol=None, touch=False, local=128, qpipe=1, qpace=0, kd=6, vd1=2, vn1=7, vd2=8, kprio=2, vprio=1, sleep=0,
        b1pipe=1, dbl=0, outpol='', cmode='1', wself=True, kpf=6, hearly=8, numa='probe', trials=3, wbar=True, early=False, nfirst=3, wpf='', dblat='c', lpol='', dlate=False, mlat=3, stw=0, ilv=True, kpol=None, vpol=None, wide=0, bal=True, b2clean='loop', addt=0, qlpol=None, otouch=False, qwait=True, pfh=True, light=None, qtouch=True, qlate=False):
    assert hearly == 8 or numa != 'probe'
    pf, fearly, ftrig, pfw, latebar, fdelay, qgate, spin, dbg, ldsx = True, True, 0, not wself, False, True, False, 0, False, 0
    fpol = pol if fpol is None else fpol
    wpol = pol if wpol is None else wpol
    n2 = 1024 - 2 * n0
    NL = -(-max(n0, n2) // 16)
    assert NL <= 32
    a = Asm()

    def stamp(i):
        if stamps:
            a(f's_memrealtime s[{80+2*i}:{81+2*i}]')

    def srd(d, p, n):
        a(f's_mov_b32 s{d}, s{p}\ns_mov_b32 s{d+1}, s{p+1}\ns_mov_b32 s{d+2}, {n}\ns_mov_b32 s{d+3}, 0x20000')

    def load_epoch():
        a('s_load_dword s35, s[26:27], 0')

    def finish_epoch():
        a('s_add_u32 s36, s35, 1\ns_and_b32 s37, s36, 0xff')

    def dump_stamps(used, dst=None):
        if not stamps:
            return
        a(f'''
        s_waitcnt lgkmcnt(0)
        s_mov_b64 exec, 1
        s_add_u32 s100, s26, {STAMP}
        s_addc_u32 s101, s27, 0
        s_lshl_b32 s77, s2, 7
        v_mov_b32 v4, s77
        ''')
        for k, i in enumerate(used):
            d = i if dst is None else dst[k]
            a(f'v_mov_b32 v6, s{80+2*i}\nv_mov_b32 v7, s{81+2*i}\nglobal_store_dwordx2 v4, v[6:7], s[100:101] offset:{d*8}\ns_nop 1')
        a('s_mov_b64 exec, -1')

    def or_tree(words):
        words = list(words)
        dst = words[0]
        first = True
        acc = None
        rest = words
        while len(rest) > 1 or acc is None:
            if acc is None:
                if len(rest) >= 3:
                    a(f'v_or3_b32 v3, v{rest[0]}, v{rest[1]}, v{rest[2]}'); rest = rest[3:]
                elif len(rest) == 2:
                    a(f'v_or_b32 v3, v{rest[0]}, v{rest[1]}'); rest = []
                else:
                    return rest[0]
                acc = 3
            else:
                a(f'v_or3_b32 v3, v3, v{rest[0]}, v{rest[1]}'); rest = rest[2:]
        if rest:
            a(f'v_or_b32 v3, v3, v{rest[0]}')
        return 3

    def gather(label, loads, tmp, fallback=None, idle=0):
        n = len(loads)
        for k in range(n):
            a(f's_mov_b64 s[{PEND+2*k}:{PEND+2*k+1}], -1')
        a(f's_mov_b32 s76, {cap}\n{label}:')
        for k, (r, w, addr) in enumerate(loads):
            if n > 1:
                a(f's_mov_b64 exec, s[{PEND+2*k}:{PEND+2*k+1}]')
            a(f'buffer_load_dwordx{w} v[{r}:{r+w-1}], {addr} sc1')
        if n > 1:
            a('s_mov_b64 exec, -1')
        t = tmp
        per = []
        for k, (r, w, addr) in enumerate(loads):
            a(f's_waitcnt vmcnt({n-1-k})')
            mine = []
            for j in range(0, w, 2):
                a(f'v_bitop3_b32 v{t}, v{r+j}, v{r+j+1}, s37 bitop3:0x7e')
                mine.append(t)
                t += 1
            per.append(mine)
        res = or_tree([x for m in per for x in m])
        a(f'v_cmp_ne_u32_sdwa vcc, v{res}, v2 src0_sel:BYTE_0 src1_sel:DWORD\ns_cbranch_vccz {label}_out')
        if n > 1:
            for k, mine in enumerate(per):
                if len(mine) == 2:
                    a(f'v_or_b32 v{mine[0]}, v{mine[0]}, v{mine[1]}')
                a(f'v_cmp_ne_u32_sdwa vcc, v{mine[0]}, v2 src0_sel:BYTE_0 src1_sel:DWORD')
                a(f's_cmp_lg_u64 vcc, 0\ns_cselect_b64 s[{PEND+2*k}:{PEND+2*k+1}], -1, 0')
        if idle:
            if n > 1:
                a(f's_and_b32 s77, s{PEND}, s{PEND+2}')
                for k in range(2, n):
                    a(f's_and_b32 s77, s77, s{PEND+2*k}')
                a(f's_cbranch_scc0 {label}_busy')
            a(f's_sleep {idle}\n{label}_busy:')
        if fallback:
            a(f's_cmp_eq_u32 s76, {cap - local}\ns_cbranch_scc0 {label}_keep')
            for r in fallback:
                a(f's_sub_u32 s{r}, s{r}, {WS_LOCAL}')
            a(f'{label}_keep:')
        a(f's_sub_u32 s76, s76, 1\ns_cbranch_scc0 {label}\n{label}_out:')

    def gather_pipe(label, loads, stride, nsets, tmp, finish, lanes=None, fallback=None, pace=0, onmiss=None):
        n = len(loads)

        def issue(s):
            for (r, w, addr) in loads:
                a(f'buffer_load_dwordx{w} v[{r+s*stride}:{r+s*stride+w-1}], {addr} sc1')

        def check(s):
            pend, acc = [], None
            for k, (r, w, addr) in enumerate(loads):
                a(f's_waitcnt vmcnt({(nsets-1)*n + n-1-k})')
                tag = f'v{lanes[k]}' if lanes and lanes[k] is not None else 's37'
                for j in range(w):
                    a(f'v_xor_b32 v{r+s*stride+j}, {tag}, v{r+s*stride+j}')
                    pend.append(r + s * stride + j)
                while len(pend) >= (3 if acc is None else 2):
                    if acc is None:
                        a(f'v_or3_b32 v{tmp}, v{pend[0]}, v{pend[1]}, v{pend[2]}')
                        pend, acc = pend[3:], tmp
                    else:
                        a(f'v_or3_b32 v{tmp}, v{tmp}, v{pend[0]}, v{pend[1]}')
                        pend = pend[2:]
            if pend:
                a(f'v_or_b32 v{tmp}, v{tmp}, v{pend[0]}')
            a(f'v_cmp_ne_u32_sdwa vcc, v{tmp}, v2 src0_sel:BYTE_0 src1_sel:DWORD')

        a(f's_mov_b32 s76, {cap}')
        for s in range(nsets - 1):
            issue(s)
            if pace:
                a(f's_sleep {pace}')
        a(f'{label}:')
        if fallback:
            a(f's_cmp_eq_u32 s76, {cap - fallback[-1]}')
            for cur, alt in fallback[:-1]:
                a(f's_cselect_b32 s{cur}, s{alt}, s{cur}')
        for s in range(nsets):
            issue((s + nsets - 1) % nsets)
            check(s)
            if s < nsets - 1:
                a(f's_cbranch_vccz {label}_ok{s}')
        a(f's_cbranch_vccz {label}_ok{nsets-1}')
        if onmiss:
            a(f's_cmp_eq_u32 s76, {cap - onmiss[0]}\ns_cbranch_scc0 {label}_nm\n{onmiss[1]}\n{label}_nm:')
        a(f's_sub_u32 s76, s76, 1\ns_cbranch_scc0 {label}')
        for s in reversed(range(nsets)):
            a(f'{label}_ok{s}:')
            finish(s * stride)
            if s:
                a(f's_branch {label}_out')
        a(f'{label}_out:')

    def gather_sticky(label, loads, tmp, init=None):
        n = len(loads)
        for k in range(n):
            a(f's_mov_b64 s[{PEND+2*k}:{PEND+2*k+1}], {init[k] if init else -1}')
        a(f's_mov_b32 s76, {cap}\n{label}:')
        for k, (r, addr) in enumerate(loads):
            a(f's_mov_b64 exec, s[{PEND+2*k}:{PEND+2*k+1}]\nbuffer_load_dwordx4 v[{r}:{r+3}], {addr} sc1')
        inloop = n == 1 or b2clean == 'loop'
        if not inloop:
            a('s_mov_b64 exec, -1')
        for k, (r, addr) in enumerate(loads):
            if inloop:
                if n > 1:
                    a(f's_mov_b64 exec, s[{PEND+2*k}:{PEND+2*k+1}]')
                a(f's_waitcnt vmcnt({n-1-k})')
                for j in range(4):
                    a(f'v_xor_b32 v{r+j}, s37, v{r+j}')
                a(f'v_or3_b32 v{tmp}, v{r}, v{r+1}, v{r+2}\nv_or_b32 v{tmp}, v{tmp}, v{r+3}')
            else:
                a(f"""
                s_waitcnt vmcnt({n-1-k})
                v_bitop3_b32 v{tmp}, v{r}, v{r+1}, s37 bitop3:0x7e
                v_bitop3_b32 v{tmp+1}, v{r+2}, v{r+3}, s37 bitop3:0x7e
                v_or_b32 v{tmp}, v{tmp}, v{tmp+1}
                """)
            a(f'v_cmp_ne_u32_sdwa s[{PEND+2*k}:{PEND+2*k+1}], v{tmp}, v2 src0_sel:BYTE_0 src1_sel:DWORD')
        a(f's_sub_u32 s76, s76, 1\ns_cbranch_scc1 {label}_out')
        a(f's_or_b64 vcc, s[{PEND}:{PEND+1}], s[{PEND+2*(n>1)}:{PEND+2*(n>1)+1}]')
        for k in range(2, n):
            a(f's_or_b64 vcc, vcc, s[{PEND+2*k}:{PEND+2*k+1}]')
        a(f's_cbranch_scc1 {label}\n{label}_out:')
        if inloop:
            a('s_mov_b64 exec, -1')
        else:
            for (r, addr) in loads:
                for j in range(4):
                    a(f'v_xor_b32 v{r+j}, s37, v{r+j}')

    def lds_wait(label, off, value, vt, va=2):
        a(f'''
        s_mov_b32 s76, {cap*4}
        {label}:
        ds_read_b32 v{vt}, v{va} offset:{off}
        s_sub_u32 s76, s76, 1
        s_cbranch_scc1 {label}_out
        s_waitcnt lgkmcnt(0)
        v_readfirstlane_b32 s77, v{vt}
        s_cmp_eq_u32 s77, {value}
        s_cbranch_scc1 {label}_out
        {f's_sleep {sleep}' if sleep else ''}
        s_branch {label}
        {label}_out:
        s_waitcnt lgkmcnt(0)
        ''')

    WQ = VK = 8
    X, XP = 72, 80
    AV = 96
    AM = 112
    AT = 116
    QD = 124
    T = 128
    VS = VK + 4 * NL
    NS = (NL + 3) // 4 * 4
    VQ = VS + NS
    VT = VQ + 4
    assert n0 % 4 == 0
    stamp(0)
    if dbl:
        a('s_memrealtime s[96:97]')
    a('''
    ; ==== entry ====
    ; (one byte every 21 for 576 lanes; the offset makes the last lane read the byte at L_end).
    ''')
    a(f"""
    s_load_dwordx16 s[4:19], s[0:1], 0
    s_load_dwordx8 s[20:27], s[0:1], 64
    s_cmpk_ge_u32 s2, 256
    s_cbranch_scc1 L_end
    """)
    a('s_lshr_b32 s33, s2, 3\ns_and_b32 s32, s33, 3')
    if prefetch:
        a(f"""
        {'s_cmp_lg_u32 s32, 3' + chr(10) + 's_cbranch_scc1 L_nopf' if pfh else ''}
        s_getpc_b64 s[66:67]
        L_pcbase:
        v_mad_u64_u32 v[4:5], vcc, v0, 21, s[66:67]
        global_load_ubyte v8, v[4:5], off offset:PFOFF
        L_nopf:
        """)
    a(f"""
    v_lshrrev_b32 v1, 6, v0
    v_and_b32 v0, 63, v0
    s_and_b32 s28, s2, 7
    v_readfirstlane_b32 s3, v1
    s_lshr_b32 s34, s2, 6
    s_lshl2_add_u32 s30, s28, s34
    s_lshl_b32 s42, 1, 26
    s_lshl_b32 s43, 1, 17
    s_sub_u32 s3, s3, 1
    s_cbranch_scc1 L_svc0
    s_cmp_eq_u32 s32, 3
    s_cbranch_scc1 L_helper
    v_lshlrev_b32 v1, 4, v0
    s_and_b32 s64, s2, 32
    s_add_u32 s64, s64, s30
    s_lshl_b32 s64, s64, 10
    s_mul_i32 s65, s32, {n0//4}
    s_and_b32 s39, s3, 3
    s_add_u32 s64, s64, s65
    s_add_u32 s64, s64, s39
    s_addk_i32 s64, 768
    s_lshl_b32 s64, s64, 10
    s_movk_i32 s65, 0x1000
    s_cmp_ge_u32 s3, 4
    s_waitcnt lgkmcnt(0)
    s_cselect_b64 s[40:41], s[8:9], s[6:7]
    s_branch L_first
    L_svc0:
    v_lshrrev_b32 v3, 4, v0
    v_and_b32 v5, 15, v0
    v_lshlrev_b32 v1, 9, v3
    v_add_lshl_u32 v1, v1, v5, 4
    s_and_b32 s33, s33, 7
    s_lshl_b32 s64, s33, 11
    s_add_u32 s64, s64, s30
    s_lshl_b32 s64, s64, 8
    s_lshl_b32 s65, 1, 15
    s_waitcnt lgkmcnt(0)
    s_mov_b64 s[40:41], s[10:11]
    L_first:
    """)
    for i in range(nfirst):
        a(f'buffer_load_dwordx4 v[{VK+4*i}:{VK+4*i+3}], v1, s[40:43], s64 offen {pol}')
        if i < nfirst - 1:
            a('s_add_u32 s64, s64, s65')
    a(f"""
    L_first_end:
    s_add_u32 s64, s64, s65
    """)
    qt = '' if not qtouch else f'''
    s_mov_b32 s56, s26
    s_mov_b32 s57, s27
    s_mov_b32 s58, {WS_ALL}
    s_mov_b32 s59, 0x20000
    s_lshl3_add_u32 s69, s30, s33
    s_lshl_b32 s69, s69, 10
    s_add_u32 s69, s69, {WS_QP + WS_LOCAL}
    v_and_b32 v6, 7, v0
    v_lshlrev_b32 v6, 7, v6
    buffer_load_dword v{T+14}, v6, s[56:59], s69 offen'''
    if early:
        a('s_memrealtime s[94:95]')
    elif stamps:
        for i in range(82, 100, 2):
            a(f's_mov_b64 s[{i}:{i+1}], 0')
    a('''
    ''')
    a(f"""
    v_mov_b32 v2, 0
    s_bfe_u32 s31, s2, 0x10005
    s_cmp_lt_i32 s3, 0
    s_cbranch_scc0 L_notsvc
    s_setprio 3
    {qt}
    v_lshlrev_b32 v6, 5, v0
    v_lshrrev_b32 v7, 5, v0
    v_lshlrev_b32 v7, 10, v7
    v_and_b32 v{T}, 31, v0
    v_lshl_add_u32 v7, v{T}, 2, v7
    s_lshl_b32 s66, s33, 7
    s_mov_b32 s44, s4
    s_mov_b32 s45, s5
    s_mov_b32 s46, 2048
    s_mov_b32 s47, 0x20000
    buffer_load_dwordx4 v[{X}:{X+3}], v6, s[44:47], 0 offen
    buffer_load_dwordx4 v[{X+4}:{X+7}], v6, s[44:47], 0 offen offset:16
    buffer_load_dword v{XP}, v7, s[44:47], s66 offen
    """)
    for i in range(nfirst, 16):
        a(f'buffer_load_dwordx4 v[{WQ+4*i}:{WQ+4*i+3}], v1, s[40:43], s64 offen {pol}')
        if i < 15:
            a('s_add_u32 s64, s64, s65')
    a(f"""
    v_mov_b32 v{T+1}, 0
    v_mov_b32 v{T}, 0
    v_lshlrev_b32 v4, 3, v0
    v_and_b32 v4, 56, v4
    ds_write_b64 v4, v[{T}:{T+1}] offset:{L_CNT}
    v_lshlrev_b32 v1, 4, v0
    s_waitcnt lgkmcnt(0)
    {'s_memrealtime s[92:93]' if early else ''}
    s_barrier
    s_branch L_service
    L_notsvc:
    """)

    a('''
    ''')
    a(f"""
    s_movk_i32 s38, {n0}
    s_cmp_eq_u32 s32, 2
    s_cselect_b32 s38, {n2}, s38
    s_add_u32 s65, s39, {4*nfirst}
    s_lshl_b32 s65, s65, 10
    s_sub_u32 s42, s64, s65
    s_lshl_b32 s65, s38, 8
    s_add_u32 s42, s42, s65
    s_cmp_ge_u32 s3, 4
    s_setprio {kprio}
    s_waitcnt lgkmcnt(0)
    s_barrier
    s_cbranch_scc1 L_vwave
    """)

    def kv_loads(depth, hook=None, pol=pol):
        for i in range(nfirst, NL):
            d = depth(i)
            if d is not None and i >= d:
                a(f's_waitcnt vmcnt({d-1})')
            a(f'buffer_load_dwordx4 v[{VK+4*i}:{VK+4*i+3}], v1, s[40:43], s64 offen {pol}')
            if i < NL - 1:
                a('s_addk_i32 s64, 0x1000')
            if hook:
                hook(i)
        stamp(1)
    def khook(i):
        if early and i == nfirst:
            a('s_memrealtime s[96:97]')
        if early and i == kd:
            a('s_memrealtime s[98:99]')
        if i == min(kpf, NL) - 1:
            if latebar:
                a('s_barrier')
            if pfw:
                a(f'''
                s_lshl_b32 s65, s34, 1
                s_add_u32 s65, s65, s31
                s_mul_i32 s65, s65, 3
                s_add_u32 s65, s65, s32
                s_lshl_b32 s65, s65, 2
                s_add_u32 s65, s65, s39
                s_lshl_b32 s65, s65, 13
                s_lshl_b32 s66, s28, 19
                s_add_u32 s65, s65, s66
                s_mov_b32 s48, s12
                s_mov_b32 s49, s13
                s_add_u32 s50, s66, 524288
                s_mov_b32 s51, 0x20000
                v_lshlrev_b32 v3, 7, v0
                buffer_load_dword v{VT+20}, v3, s[48:51], s65 offen {pfpol}
                ''')
    kv_loads(lambda i: kd, khook, pol if kpol is None else kpol)
    a('s_setprio 2')
    vq, vsw, vsr, vc = VT, VT + 1, VT + 2, VT + 3
    p0 = VT + 4
    vm2, vl = VT + 6, VT + 7
    tt = VT + 8
    a(f'''
    v_and_b32 v3, 15, v0
    v_lshrrev_b32 v4, 4, v0
    v_lshlrev_b32 v{vq}, 4, v3
    s_lshl_b32 s66, s39, 9
    v_lshlrev_b32 v{vsw}, 7, v4
    v_add_u32 v{vsw}, s66, v{vsw}
    v_lshlrev_b32 v{vsr}, 3, v0
    v_add_u32 v{vsr}, s66, v{vsr}
    v_mov_b32 v{vc}, 0x{f2u(LOG2E if mimic else LOG2E*SCALE):08x}
    s_lshl_b32 s66, s39, 2
    v_lshl_add_u32 v5, v3, 5, v4
    v_add_u32 v5, s66, v5
    v_cmp_gt_u32 s[60:61], s38, v5
    v_add_u32 v5, 16, v5
    v_cmp_gt_u32 s[62:63], s38, v5
    s_lshl_b32 s66, s39, 3
    v_mov_b32 v5, s66
    v_lshrrev_b32 v4, 1, v5
    v_mov_b32 v6, 1
    v_mov_b32 v7, 0xff800000
    ''')
    a('''
    ''')
    lds_wait('L_qwait', L_CNT + 12, 1, tt)
    a(f'ds_read_b128 v[{VQ}:{VQ+3}], v{vq} offset:{L_Q}')
    stamp(2)
    a('s_waitcnt lgkmcnt(0)')
    groups = [list(range(i, min(i + 4, NL))) for i in range(0, NL, 4)]
    def s_write(ks):
        a('s_mov_b32 exec_lo, 0x00010001\ns_mov_b32 exec_hi, 0x00010001')
        for k in ks:
            a(f'ds_write_b128 v{vsw}, v[{VS+4*k}:{VS+4*k+3}] offset:{L_P+16*k}')
        a('s_mov_b64 exec, -1')
    for gi, grp in enumerate(groups):
        if gi == len(groups) - 1:
            s_write(range(gi))
        for i in grp:
            a(f's_waitcnt vmcnt({NL-1-i + (1 if pfw and i < min(kpf, NL) else 0)})')
            for r in range(4):
                src = '0' if r == 0 else f'v{VS+i}'
                a(f'v_dot2_f32_bf16 v{VS+i}, v{VK+4*i+r}, v{VQ+r}, {src}')
        for step, ror in enumerate((8, 4, 2, 1)):
            need = 3 if step == 0 else 2
            if len(grp) - 1 < need:
                a(f's_nop {need - (len(grp) - 1) - 1}')
            for i in grp:
                a(f'v_add_f32_dpp v{VS+i}, v{VS+i}, v{VS+i} row_ror:{ror} {DPP}')
    s_write([len(groups) - 1])
    a(f'''
    ds_read_b64 v[{p0}:{p0+1}], v{vsr} offset:{L_P}
    s_waitcnt lgkmcnt(0)
    ''')
    stamp(3)
    if mimic:
        a(f'''
        v_cvt_pk_bf16_f32 v{tt}, v{p0}, v{p0+1}
        v_lshlrev_b32 v{p0}, 16, v{tt}
        v_and_b32 v{p0+1}, 0xffff0000, v{tt}
        v_mul_f32 v{p0}, 0x{f2u(SCALE):08x}, v{p0}
        v_mul_f32 v{p0+1}, 0x{f2u(SCALE):08x}, v{p0+1}
        v_cvt_pk_bf16_f32 v{tt}, v{p0}, v{p0+1}
        v_lshlrev_b32 v{p0}, 16, v{tt}
        v_and_b32 v{p0+1}, 0xffff0000, v{tt}
        ''')
    a(f'''
    v_cndmask_b32 v{p0}, v7, v{p0}, s[60:61]
    v_cndmask_b32 v{p0+1}, v7, v{p0+1}, s[62:63]
    v_max_f32 v{vm2}, v{p0}, v{p0+1}
    ''')
    for mod in ('row_ror:8 ' + DPP, 'row_ror:4 ' + DPP, 'row_ror:2 ' + DPP, 'row_ror:1 ' + DPP,
                'row_bcast:15 row_mask:0xa bank_mask:0xf', 'row_bcast:31 row_mask:0xc bank_mask:0xf'):
        a(f's_nop 1\nv_max_f32_dpp v{vm2}, v{vm2}, v{vm2} {mod}')
    a(f'''
    v_mul_f32 v{vm2}, v{vc}, v{vm2}
    s_nop 0
    v_readlane_b32 s66, v{vm2}, 63
    s_nop 1
    v_fma_f32 v{p0}, v{p0}, v{vc}, -s66
    v_fma_f32 v{p0+1}, v{p0+1}, v{vc}, -s66
    v_exp_f32 v{p0}, v{p0}
    v_exp_f32 v{p0+1}, v{p0+1}
    s_nop 0
    v_cvt_pk_bf16_f32 v{tt}, v{p0}, v{p0}
    v_cvt_pk_bf16_f32 v{tt+1}, v{p0+1}, v{p0+1}
    v_add_f32 v{vl}, v{p0}, v{p0+1}
    ds_write_b64 v{vsr}, v[{tt}:{tt+1}] offset:{L_P}
    s_mov_b64 exec, 1
    ds_write_b32 v4, v6 offset:{L_CNT+48}
    s_mov_b64 exec, -1
    ''')
    for k, mod in enumerate(('row_ror:8 ' + DPP, 'row_ror:4 ' + DPP, 'row_ror:2 ' + DPP, 'row_ror:1 ' + DPP,
                             'row_bcast:15 row_mask:0xa bank_mask:0xf', 'row_bcast:31 row_mask:0xc bank_mask:0xf')):
        a(f's_nop {0 if k == 0 else 1}\nv_add_f32_dpp v{vl}, v{vl}, v{vl} {mod}')
    a(f'''
    s_mov_b32 exec_lo, 0
    s_mov_b32 exec_hi, 0x80000000
    ds_write_b64 v5, v[{vm2}:{vl}] offset:{L_ML}
    ds_add_u32 v2, v6 offset:{L_CNT+8}
    s_mov_b64 exec, -1
    ''')
    stamp(4)
    if stamps:
        a(f's_cmp_lg_u32 s3, {stw}\ns_cbranch_scc1 L_k_nostamp')
        dump_stamps([0, 1, 2, 3, 4] + ([7, 8, 9] if early else []))
        a('L_k_nostamp:')
    a('s_endpgm')

    VM = VQ
    VD = VT
    VA = VT + 4
    vO = VT + 12
    vML = vO + 2
    vow, vrd, vmask, vpr, vone = VT + 16, VT + 17, VT + 18, VT + 19, VT + 22
    u = VT + 20
    vmr, vfl = VT + 23, VT + 22
    a('''
    ''')
    a(f'L_vwave:\ns_setprio {vprio}')
    PFA = min(max(pf_at, nfirst + 1), NL)

    plain = 's_mul_i32 s65, s65, 3\ns_add_u32 s65, s65, s32'
    balanced = ('s_add_u32 s66, s65, 16\ns_lshl1_add_u32 s65, s65, s32\ns_cmp_eq_u32 s32, 2\ns_cselect_b32 s65, s66, s65')

    def vhook(i):
        if latebar and i == min(vd1 or NL, NL) - 1:
            a('s_barrier')
        if i == nfirst:
            load_epoch()
            srd(56, 26, WS_ALL)
            if pf:
                a(f'''
                s_lshl_b32 s65, s34, 1
                s_add_u32 s65, s65, s31
                {balanced if bal else plain}
                s_lshl_b32 s65, s65, 2
                s_add_u32 s65, s65, s39
                s_min_u32 s66, s28, 3
                s_mul_i32 s67, s28, 5
                s_add_u32 s66, s66, s67
                s_cmp_lt_u32 s28, 3
                s_cselect_b32 s67, 6, 5
                s_mov_b32 s50, 1409024
                s_mov_b32 s51, 0x20000
                s_cmp_ge_u32 s65, 64
                s_cbranch_scc1 L_pf_down
                s_cmp_ge_u32 s65, 32
                s_cselect_b32 s48, s18, s16
                s_cselect_b32 s49, s19, s17
                s_and_b32 s65, s65, 31
                s_mul_i32 s65, s65, {16*2752}
                s_lshl_b32 s66, s66, 6
                s_add_u32 s65, s65, s66
                s_lshl_b32 s67, s67, 6
                v_lshrrev_b32 v3, 2, v0
                v_mul_u32_u24 v3, 2752, v3
                v_add_u32 v3, s65, v3
                v_add_u32 v4, s67, v3
                v_and_b32 v3, 0xffffff80, v3
                v_and_b32 v5, 3, v0
                v_lshl_add_u32 v3, v5, 7, v3
                s_branch L_pf_join
                L_pf_down:
                s_cmp_lt_u32 s65, 88
                s_cbranch_scc1 L_pf_down2
                s_mov_b32 s48, s12
                s_mov_b32 s49, s13
                s_mov_b32 s50, 4194304
                s_sub_u32 s65, s65, 88
                s_lshl_b32 s65, s65, 13
                s_lshl_b32 s67, s67, 16
                s_add_u32 s65, s65, s67
                s_lshl_b32 s67, s28, 19
                s_add_u32 s65, s65, s67
                v_lshlrev_b32 v3, 7, v0
                v_add_u32 v3, s65, v3
                v_mov_b32 v4, {4194304 if numa == 'probe' else 0}
                s_branch L_pf_join
                L_pf_down2:
                s_mov_b32 s48, s20
                s_mov_b32 s49, s21
                s_sub_u32 s65, s65, 64
                s_lshl_b32 s65, s65, 13
                s_add_u32 s67, s67, s66
                s_lshl_b32 s66, s66, 15
                s_lshl_b32 s67, s67, 15
                s_add_u32 s65, s65, s66
                v_lshlrev_b32 v3, 7, v0
                v_add_u32 v3, s65, v3
                v_mov_b32 v4, s67
                s_mov_b32 s52, 0
                s_mov_b32 s53, s50
                s_branch L_pf_join2
                L_pf_join:
                s_mov_b32 s52, s50
                s_mov_b32 s53, 0
                L_pf_join2:
                v_cmp_lt_u32 vcc, v3, v4
                v_mov_b32 v4, 0x7ffffff0
                s_nop 0
                v_cndmask_b32 v6, v4, v3, vcc
                ''')
        if i == nfirst + 1:
            a(f'''
            v_and_b32 v3, 15, v0
            v_and_b32 v4, 1, v0
            v_mov_b32 v5, 0xffff
            v_lshlrev_b32 v4, 4, v4
            v_lshlrev_b32 v5, v4, v5
            v_lshrrev_b32 v4, 1, v3
            ''')
            for r in range(4):
                a(f'v_cmp_eq_u32 vcc, {r}, v4\ns_nop 1\nv_cndmask_b32 v{VM+r}, 0, v5, vcc')
            a(f'''
            v_lshrrev_b32 v4, 4, v0
            v_lshlrev_b32 v3, 5, v3
            v_lshl_add_u32 v3, v4, 4, v3
            s_lshl_b32 s66, s39, 9
            v_add_u32 v{vow}, s66, v3
            v_lshlrev_b32 v{vpr}, 7, v4
            v_add_u32 v{vpr}, s66, v{vpr}
            v_lshlrev_b32 v{vrd}, 3, v0
            v_and_b32 v{vmr}, 3, v0
            v_lshlrev_b32 v{vmr}, 3, v{vmr}
            v_mov_b32 v{vmask}, 0xffffff00
            s_lshl_b32 s66, s39, 2
    v_mov_b32 v{vfl}, s66
            s_lshl_b32 s68, s30, 1
            s_add_u32 s68, s68, s31
            s_mul_i32 s68, s68, 3
            s_add_u32 s68, s68, s32
            s_mul_i32 s68, s68, {OPREC}
            s_add_u32 s68, s68, {WS_OP}
            s_add_u32 s69, s68, {WS_LOCAL}
            s_waitcnt lgkmcnt(0)
            ''')
        if pf and i == PFA - 1:
            if dlate:
                a('s_mov_b32 s50, s52')
            a(f'buffer_load_dword v7, v6, s[48:51], 0 offen {pfpol}')
        if dlate and i == NL - 1:
            a(f's_mov_b32 s50, s53\nbuffer_load_dword v7, v6, s[48:51], 0 offen {pfpol}')
            if ftrig:
                a(f'''
                s_waitcnt lgkmcnt(0)
                s_add_u32 s36, s35, 1
                v_mov_b32 v3, s36
                s_mov_b64 exec, 1
                buffer_store_dword v3, v2, s[56:59], s52 offen
                s_mov_b64 exec, -1
                ''')
    kv_loads(lambda i: vd1 if i < vn1 else vd2, vhook, pol if vpol is None else vpol)
    a('s_setprio 2')
    finish_epoch()
    stamp(2)
    a('''
    ''')
    lds_wait('L_kwait', L_CNT + 48, 1, u, vfl)
    for k in range(NS // 4):
        a(f'ds_read_b128 v[{VS+4*k}:{VS+4*k+3}], v{vpr} offset:{L_P+16*k}')
    stamp(3)

    def build(i):
        at = VA + 4 * (i & 1)
        for r in range(4):
            a(f'v_and_b32 v{at+r}, v{VS+i}, v{VM+r}')
    a(f's_waitcnt lgkmcnt({NS//4 - 1})')
    build(0)
    for i in range(NL):
        at = VA + 4 * (i & 1)
        if i == NL - mlat:
            lds_wait('L_kall', L_CNT + 8, 4, u)
            a(f"""
            ds_read_b64 v[{u}:{u+1}], v{vmr} offset:{L_ML}
            s_waitcnt lgkmcnt(0)
            v_max_f32_dpp v{vML}, v{u}, v{u} quad_perm:[1,0,3,2] {DPP}
            s_nop 1
            v_max_f32_dpp v{vML}, v{vML}, v{vML} quad_perm:[2,3,0,1] {DPP}
            v_and_b32 v{vML}, v{vmask}, v{vML}
            v_sub_f32 v{u}, v{u}, v{vML}
            v_exp_f32 v{u}, v{u}
            v_or_b32 v{vML}, s37, v{vML}
            v_mul_f32 v{vML+1}, v{u}, v{u+1}
            v_readlane_b32 s66, v{u}, s39
            s_nop 0
            v_add_f32_dpp v{vML+1}, v{vML+1}, v{vML+1} quad_perm:[1,0,3,2] {DPP}
            s_nop 1
            v_add_f32_dpp v{vML+1}, v{vML+1}, v{vML+1} quad_perm:[2,3,0,1] {DPP}
            v_and_or_b32 v{vML+1}, v{vML+1}, v{vmask}, s37
            """)
        if i + 1 < NL:
            if (i + 1) % 4 == 0 and i + 1 < NL - mlat + 1:
                a(f's_waitcnt lgkmcnt({NS//4 - 1 - (i+1)//4})')
            build(i + 1)
        else:
            a('s_nop 0')
        a(f's_waitcnt vmcnt({NL-1-i + (1 if pf and i < PFA else 0) + (1 if dlate else 0)})')
        c = '0' if i == 0 else f'v[{VD}:{VD+3}]'
        a(f'v_mfma_f32_16x16x32_bf16 v[{VD}:{VD+3}], v[{at}:{at+3}], v[{VK+4*i}:{VK+4*i+3}], {c}')
    stamp(5)
    O = VK
    a('''
    ''')
    a(f'''
    s_mov_b32 exec_hi, 0
    s_cmp_eq_u32 s39, 0
    s_cselect_b32 s68, s69, s68
    s_cmp_gt_u32 s39, 1
    s_nop 3
    v_mul_f32 v{VD}, s66, v{VD}
    v_mul_f32 v{VD+1}, s66, v{VD+1}
    v_mul_f32 v{VD+2}, s66, v{VD+2}
    v_mul_f32 v{VD+3}, s66, v{VD+3}
    ds_write_b128 v{vow}, v[{VD}:{VD+3}] offset:{L_OW}
    s_mov_b64 exec, -1
    s_waitcnt lgkmcnt(0)
    s_barrier
    s_cbranch_scc1 {'L_v_late' if stamps and stw else 'L_end'}
    ''')
    for k in range(4):
        a(f'ds_read_b64 v[{O+2*k}:{O+2*k+1}], v{vrd} offset:{L_OW+512*k}')
    a(f'''
    s_cmp_eq_u32 s39, 0
    s_waitcnt lgkmcnt(2)
    v_pk_add_f32 v[{O}:{O+1}], v[{O}:{O+1}], v[{O+2}:{O+3}]
    s_waitcnt lgkmcnt(0)
    v_pk_add_f32 v[{O+4}:{O+5}], v[{O+4}:{O+5}], v[{O+6}:{O+7}]
    v_pk_add_f32 v[{vO}:{vO+1}], v[{O}:{O+1}], v[{O+4}:{O+5}]
    v_and_or_b32 v{vO}, v{vO}, v{vmask}, s37
    v_and_or_b32 v{vO+1}, v{vO+1}, v{vmask}, s37
    s_cbranch_scc0 L_o_global
    buffer_store_dwordx4 v[{vO}:{vO+3}], v1, s[56:59], s68 offen {lpol}
    ''')
    stamp(6)
    dump_stamps([6] if stw else [2, 3, 5, 6], [6] if stw else [15, 14, 5, 6])
    if stamps and stw:
        a(f's_endpgm\nL_v_late:\ns_cmp_lg_u32 s39, {stw}\ns_cbranch_scc1 L_end')
        dump_stamps([2, 3, 5], [15, 14, 5])
    a(f's_endpgm\nL_o_global:\nbuffer_store_dwordx4 v[{vO}:{vO+3}], v1, s[56:59], s68 offen sc1\ns_endpgm')

    a('''
    ''')
    a('L_service:')
    load_epoch()
    stamp(1)
    a(f'''
    v_and_b32 v6, 1, v0
    v_mov_b32 v7, 0xffff
    v_lshlrev_b32 v6, 4, v6
    v_lshlrev_b32 v7, v6, v7
    v_bfe_u32 v6, v0, 1, 2
    ''')
    for r in range(4):
        a(f'v_cmp_eq_u32 vcc, {r}, v6\ns_nop 1\nv_cndmask_b32 v{AM+r}, 0, v7, vcc')
    srd(56, 26, WS_ALL)
    a(f'''
    v_and_b32 v6, 1, v0
    v_lshlrev_b32 v6, 7, v6
    v_bfe_u32 v7, v0, 1, 4
    v_lshl_add_u32 v6, v7, 2, v6
    v_lshrrev_b32 v7, 5, v0
    v_lshl_add_u32 v6, v7, 8, v6
    v_bfe_u32 v7, v0, 3, 1
    v_lshlrev_b32 v7, 8, v7
    v_lshl_add_u32 v7, v3, 6, v7
    s_lshl_b32 s68, s30, 3
    s_add_u32 s68, s68, s33
    s_lshl_b32 s68, s68, 10
    s_add_u32 s68, s68, {WS_QP}
    s_add_u32 s69, s68, {WS_LOCAL}
    v_mov_b32 v{T+4}, 0xffffff00
    s_mov_b32 s39, 0x3f803f80
    s_waitcnt vmcnt({17 - nfirst})
    ''')
    for r in range(4):
        for k, (x, y) in enumerate(((X + r, 's39'), (X + r, None), (X + 4 + r, 's39'), (X + 4 + r, None))):
            a(f'v_dot2_f32_bf16 v{T+k}, v{x}, {y or f"v{x}"}, {"0" if r == 0 else f"v{T+k}"}')
    a(f'''
    s_nop 1
    v_add_f32 v{T}, v{T}, v{T+2}
    s_nop 0
    v_add_f32 v{T+1}, v{T+1}, v{T+3}
    s_nop 0
    ''')
    for ror in (8, 4, 2, 1):
        a(f'v_add_f32_dpp v{T}, v{T}, v{T} row_ror:{ror} {DPP}\nv_add_f32_dpp v{T+1}, v{T+1}, v{T+1} row_ror:{ror} {DPP}\ns_nop 0')
    a(f'''
    v_mov_b32 v{T+2}, v{T}
    v_mov_b32 v{T+3}, v{T+1}
    s_nop 0
    v_permlane16_swap_b32 v{T}, v{T+2}
    v_permlane16_swap_b32 v{T+1}, v{T+3}
    s_nop 0
    v_add_f32 v{T}, v{T}, v{T+2}
    v_add_f32 v{T+1}, v{T+1}, v{T+3}
    v_mul_f32 v{T}, 0x{f2u(1/512):08x}, v{T}
    v_mul_f32 v{T+1}, 0x{f2u(1/512):08x}, v{T+1}
    v_fma_f32 v{T+1}, -v{T}, v{T}, v{T+1}
    v_max_f32 v{T+1}, 0, v{T+1}
    v_cvt_pk_bf16_f32 v{T}, v{T}, v{T+1}
    v_and_b32 v{T+1}, 0xffff0000, v{T}
    v_lshlrev_b32 v{T}, 16, v{T}
    v_add_f32 v{T+1}, 0x{f2u(1e-5):08x}, v{T+1}
    v_cvt_pk_bf16_f32 v{T+1}, v{T+1}, v{T+1}
    v_lshlrev_b32 v{T+1}, 16, v{T+1}
    v_sqrt_f32 v{T+1}, v{T+1}
    s_waitcnt vmcnt({16 - nfirst})
    v_lshlrev_b32 v{T+2}, 16, v{XP}
    v_cvt_pk_bf16_f32 v{T+1}, v{T+1}, v{T+1}
    v_and_b32 v{T+3}, 0xffff0000, v{XP}
    v_lshlrev_b32 v{T+1}, 16, v{T+1}
    v_sub_f32 v{T+2}, v{T+2}, v{T}
    v_rcp_f32 v{T+1}, v{T+1}
    v_sub_f32 v{T+3}, v{T+3}, v{T}
    v_cvt_pk_bf16_f32 v{T}, v{T+2}, v{T+3}
    v_lshlrev_b32 v{T+2}, 16, v{T}
    v_and_b32 v{T+3}, 0xffff0000, v{T}
    v_mul_f32 v{T+2}, v{T+2}, v{T+1}
    v_mul_f32 v{T+3}, v{T+3}, v{T+1}
    v_cvt_pk_bf16_f32 v{T+2}, v{T+2}, v{T+2}
    v_cvt_pk_bf16_f32 v{T+3}, v{T+3}, v{T+3}
    ds_write2_b32 v6, v{T+2}, v{T+3} offset0:{L_XN//4} offset1:{L_XN//4 + 16}
    ''')
    for qd in range(4):
        a(f'ds_read_b128 v[{AV+4*qd}:{AV+4*qd+3}], v7 offset:{L_XN+16*qd}')
    a('s_waitcnt lgkmcnt(0)')
    finish_epoch()
    stamp(2)
    for i in range(16):
        at = AT + 4 * (i & 1)
        for r in range(4):
            a(f'v_and_b32 v{at+r}, v{AV+i}, v{AM+r}')
        a(f's_waitcnt vmcnt({min(15-i, 16-nfirst)})\ns_nop 0')
        c = '0' if i == 0 else f'v[{QD}:{QD+3}]'
        a(f'v_mfma_f32_16x16x32_bf16 v[{QD}:{QD+3}], v[{at}:{at+3}], v[{WQ+4*i}:{WQ+4*i+3}], {c}')
    a(f'''
    v_lshrrev_b32 v6, 5, v0
    v_and_b32 v7, 31, v0
    v_lshlrev_b32 v{T}, 12, v6
    v_lshl_add_u32 v{T}, v7, 4, v{T}
    v_lshlrev_b32 v7, 4, v5
    v_lshl_add_u32 v7, v6, 2, v7
    v_and_b32 v6, 1, v3
    v_lshl_add_u32 v7, v6, 3, v7
    ''')
    for r in range(4):
        a(f'v_add_u32 v{QD+r}, 0x80, v{QD+r}')
    for r in range(4):
        a(f'v_and_or_b32 v{QD+r}, v{QD+r}, v{T+4}, s37')
    if local:
        a(f'buffer_store_dwordx4 v[{QD}:{QD+3}], v1, s[56:59], s69 offen {lpol if qlpol is None else qlpol}')
    qglobal = f'buffer_store_dwordx4 v[{QD}:{QD+3}], v1, s[56:59], s68 offen sc1'
    if not qlate:
        a(qglobal)
    stamp(3)
    a(f'''
    s_cmp_eq_u32 s32, 3
    s_cbranch_scc1 L_svc_end
    s_lshl_b32 s52, s30, 4
    s_add_u32 s52, s52, s31
    s_lshl_b32 s52, s52, 9
    s_add_u32 s53, s52, {WS_QP}
    s_add_u32 s52, s53, {WS_LOCAL}
    ''')
    if qgate:
        a(f'''
        s_add_u32 s54, s26, s52
        s_addc_u32 s55, s27, 0
        s_mov_b32 s76, {cap}
        L_qgate:
        ''')
        for k in range(8):
            a(f's_load_dword s{60+k}, s[54:55], {1024*k+508} glc')
        a('s_waitcnt lgkmcnt(0)')
        for k in range(8):
            a(f's_xor_b32 s{60+k}, s{60+k}, s37')
        for k in range(1, 8):
            a(f's_or_b32 s60, s60, s{60+k}')
        a(f'''
        s_sub_u32 s76, s76, 1
        s_cbranch_scc1 L_qgate_out
        s_and_b32 s60, s60, 0xff
        s_cbranch_scc1 L_qgate
        L_qgate_out:
        ''')
    stamp(5)
    QS = X

    def qfin(o):
        a(f'v_pk_add_f32 v[{QS}:{QS+1}], v[{WQ+o}:{WQ+o+1}], v[{WQ+o+4}:{WQ+o+5}]')
        a(f'v_pk_add_f32 v[{QS+2}:{QS+3}], v[{WQ+o+2}:{WQ+o+3}], v[{WQ+o+6}:{WQ+o+7}]')
        for k in range(2, 4):
            a(f'v_pk_add_f32 v[{QS}:{QS+1}], v[{QS}:{QS+1}], v[{WQ+o+4*k}:{WQ+o+4*k+1}]')
            a(f'v_pk_add_f32 v[{QS+2}:{QS+3}], v[{QS+2}:{QS+3}], v[{WQ+o+4*k+2}:{WQ+o+4*k+3}]')
    if qwait:
        a('s_waitcnt vmcnt(0)')
    gather_pipe('L_qpoll', [(WQ + 4 * k, 4, f'v{T}, s[56:59], s52 offen offset:{1024*k}') for k in range(4)], 16, qpipe, AV,
                qfin, fallback=((52, 53), 12 // qpipe), pace=qpace,
                onmiss=(2, qglobal) if qlate else None)
    a(f'''
    v_mov_b32 v{T+1}, 1
    s_nop 0
    v_permlane32_swap_b32 v{QS}, v{QS+2}
    v_permlane32_swap_b32 v{QS+1}, v{QS+3}
    s_nop 0
    v_pk_add_f32 v[{QS}:{QS+1}], v[{QS}:{QS+1}], v[{QS+2}:{QS+3}]
    v_cvt_pk_bf16_f32 v{QS}, v{QS}, v{QS+1}
    ds_write_b32 v7, v{QS} offset:{L_Q}
    ds_write_b32 v2, v{T+1} offset:{L_CNT+12}
    ''')
    stamp(4)
    a('L_svc_end:')
    if qlate:
        a(qglobal)
    dump_stamps([7 if early else 5, 6 if early else 2, 3, 4], [10, 11, 12, 13])
    if stamps:
        a('s_cmp_lg_u32 s32, 3\ns_cbranch_scc1 L_svc_notH')
        dump_stamps([0])
        a('L_svc_notH:')
    a('s_endpgm')

    WA = 8
    FA = 40
    FDN = 72
    G = FG = 88
    WB = FB = 104
    WD = FD = 112
    FT = 132
    vTD, vTS, vMK, vO1, vPWw, vL8, vAP, vSZ, _, vG = range(FT, FT + 10)
    vPW, vPR, vSW, vAW, vDP, vSR, vS2, vH2 = range(FT + 10, FT + 18)
    vAR = FT + 18
    vX0, vX1, vCS = FT + 22, FT + 23, FT + 24
    t0 = FT + 26
    vTG, vGU, vX, vTW, vPF = range(FD + 12, FD + 17)
    PFH = FD
    RG, RT = 8, FT + 10
    a('''
    ; all: o @ wo for 512 rows x 64 columns; s39 = 0: FFN slice s38 (32 columns), 1: final reducer wave s38, 2: nothing more
    ''')
    a('L_helper:')
    if stamps:
        for i in range(82, 100, 2):
            a(f's_mov_b64 s[{i}:{i+1}], 0')
    a(f"""
    v_mov_b32 v2, 0
    v_lshlrev_b32 v1, 4, v0
    s_bfe_u32 s31, s2, 0x10005
    s_lshl_b32 s64, s34, 1
    s_add_u32 s64, s64, s31
    s_min_u32 s65, s28, 3
    s_mul_i32 s66, s28, 5
    s_add_u32 s66, s66, s65
    s_add_u32 s38, s66, s64
    s_cmp_lt_u32 s28, 3
    s_cselect_b32 s65, 6, 5
    s_mov_b32 s39, 0
    s_mov_b32 s77, {hearly}
    s_cmp_lt_u32 s64, s65
    s_cbranch_scc1 L_h_role
    s_sub_u32 s65, s64, s65
    {'s_cmp_eq_u32 s65, 0' + chr(10) + 's_cselect_b32 s77, 0, s77' if numa == 'probe' else ''}
    s_lshl_b32 s38, s28, 1
    s_add_u32 s38, s38, s65
    s_lshl_b32 s38, s38, 2
    s_add_u32 s38, s38, s3
    s_lshr_b32 s65, s65, 1
    s_lshr_b32 s66, s3, 2
    s_or_b32 s65, s65, s66
    s_add_u32 s39, s65, 1
    L_h_role:
    v_lshrrev_b32 v5, 3, v0
    v_and_b32 v6, 7, v0
    v_and_b32 v7, 6, v5
    v_xor_b32 v6, v6, v7
    v_lshlrev_b32 v6, 4, v6
    v_lshl_add_u32 v{vTS}, v5, 10, v6
    s_lshl_b32 s65, s28, 19
    s_lshl_b32 s66, s3, 16
    s_add_u32 s65, s65, s66
    s_lshl_b32 s66, s64, 7
    s_add_u32 s65, s65, s66
    s_mul_i32 s79, s3, 12288
    s_add_u32 s79, s79, {L_W}
    s_waitcnt lgkmcnt(0)
    """)
    load_epoch()
    srd(48, 22, 2048)
    srd(52, 4, 2048)
    srd(56, 26, WS_ALL)

    def wide_pf():
        if not wide:
            return f'buffer_load_dword v{FD+1}, v{vPF}, s[72:75], s78 offen {wpf}'
        out = []
        for i in range(8):
            if i >= wide:
                out.append(f's_waitcnt vmcnt({wide-1})')
            out.append(f'buffer_load_dwordx4 v[{FD}:{FD+3}], v1, s[72:75], s78 offen {wpf}')
            out.append('s_addk_i32 s78, 0x400')
        return chr(10).join(out)

    if wself:
        srd(72, 12, 4194304)
        a(f"""
        s_lshl_b32 s68, s64, 16
        s_lshl_b32 s78, s28, 19
        s_add_u32 s78, s78, s68
        s_lshl_b32 s68, s3, 13
        s_add_u32 s78, s78, s68
        v_lshlrev_b32 v{vPF}, 7, v0
        """)
    a('s_waitcnt lgkmcnt(0)\ns_barrier')
    if wself:
        a(f"""
        s_cmp_ge_u32 s3, s77
        s_cbranch_scc1 {'L_h_probe' if numa == 'probe' else 'L_h_late'}
        {wide_pf()}
        L_h_late:
        """)
    a('''
    ''')
    if numa == 'probe':
        a(f"""
        s_branch L_h_noprobe
        L_h_probe:
        s_cmp_lg_u32 s3, 7
        s_cbranch_scc1 L_h_noprobe
        s_lshl_b32 s60, s28, 7
        s_add_u32 s60, s60, {WS_PROBE}
        s_add_u32 s61, s60, 8192
        s_mov_b32 s62, -1
        s_mov_b32 s63, -1
        s_mov_b64 exec, 1
        buffer_store_dword v2, v2, s[56:59], s60 offen sc1
        buffer_store_dword v2, v2, s[56:59], s61 offen sc1
        s_waitcnt vmcnt(0)
        """)
        for k in range(2 * trials):
            a(f"""
            s_memtime s[68:69]
            s_waitcnt lgkmcnt(0)
            buffer_store_dword v2, v2, s[56:59], s{60 + (k & 1)} offen sc1
            s_waitcnt vmcnt(0)
            s_memtime s[66:67]
            s_waitcnt lgkmcnt(0)
            s_sub_u32 s68, s66, s68
            s_min_u32 s{62 + (k & 1)}, s{62 + (k & 1)}, s68
            """)
        a(f"""
        s_lshl_b32 s68, s35, 1
        s_cmp_lt_u32 s63, s62
        s_addc_u32 s68, s68, 2
        v_mov_b32 v3, s68
        buffer_store_dword v3, v2, s[56:59], s60 offen offset:1024 sc1
        s_mov_b64 exec, -1
        L_h_noprobe:
        """)
    a('s_barrier')
    if numa in (None, 'probe'):
        select_copy = 's_mov_b32 s29, 0'
    else:
        select_copy = f's_getreg_b32 s29, hwreg(HW_REG_XCC_ID)\ns_lshr_b32 s29, s29, 2\ns_xor_b32 s29, s29, {numa}\ns_and_b32 s29, s29, 1\ns_lshl_b32 s29, s29, 13'
    a(f"""
    s_lshr_b32 s66, s3, 1
    s_lshl_b32 s65, s28, 2
    s_add_u32 s66, s66, s65
    s_mul_i32 s66, s66, {6*OPREC}
    s_add_u32 s33, s66, {WS_OP + (WS_LOCAL if local else 0)}
    s_and_b32 s65, s3, 1
    s_lshl_b32 s65, s65, 9
    s_add_u32 s32, s33, s65
    s_lshr_b32 s30, s28, 1
    s_lshl_b32 s30, s30, 14
    s_and_b32 s66, s28, 1
    s_lshl_b32 s66, s66, 12
    s_add_u32 s30, s30, s66
    s_lshl_b32 s66, s64, 8
    s_add_u32 s30, s30, s66
    s_add_u32 s30, s30, {WS_AP}
    s_and_b32 s66, s3, {1 if numa is not None else 0}
    s_lshl_b32 s66, s66, 13
    s_add_u32 s30, s30, s66
    {select_copy}
    s_lshl_b32 s69, s3, 8
    v_lshrrev_b32 v6, 5, v0
    v_and_b32 v7, 31, v0
    v_bfe_u32 v3, v0, 3, 1
    v_mul_u32_u24 v4, {3*OPREC}, v3
    v_and_b32 v5, 7, v0
    v_lshl_add_u32 v4, v5, 4, v4
    v_lshrrev_b32 v5, 4, v0
    v_lshl_add_u32 v{vO1}, v5, 7, v4
    v_lshlrev_b32 v4, 7, v3
    v_lshl_add_u32 v4, v5, 4, v4
    s_lshl_b32 s66, s3, 9
    v_add_u32 v{vPW}, {'v4' if ilv else 's66'}, v4
    {f'v_add_u32 v{vPW}, s66, v{vPW}' if ilv else ''}
    v_lshl_add_u32 v4, v3, 7, v4
    v_add_u32 v{vPWw}, s66, v4
    v_mov_b32 v{vG}, 0
    v_mov_b32 v{vS2}, 0
    v_lshlrev_b32 v{vL8}, 3, v0
    v_lshlrev_b32 v{vAP}, 11, v6
    v_lshl_add_u32 v{vAP}, v7, 3, v{vAP}
    v_mov_b32 v{vMK}, 0xffffff00
    v_mov_b32 v{vPR}, 0
    v_mov_b32 v{vSW}, 0
    v_mov_b32 v{vGU}, 0
    v_mov_b32 v{vDP}, 0
    v_bfe_u32 v3, v0, 2, 2
    v_lshl_add_u32 v3, v5, 2, v3
    v_and_b32 v4, 3, v0
    v_lshlrev_b32 v4, 3, v4
    v_lshl_add_u32 v{vTD}, v3, 7, v4
    v_add_u32 v{vTD}, s79, v{vTD}
    v_bfe_u32 v3, v3, 1, 2
    v_lshlrev_b32 v{vSZ}, 5, v3
    v_bfe_u32 v3, v0, 2, 2
    v_lshl_add_u32 v{vTW}, v5, 4, v3
    v_lshl_add_u32 v{vTW}, v{vTW}, 7, v4
    v_add_u32 v{vTW}, s79, v{vTW}
    v_bfe_u32 v{vTG}, v0, 4, 1
    v_lshlrev_b32 v{vTG}, 5, v{vTG}
    v_lshl_add_u32 v{vTG}, v6, 1, v{vTG}
    v_bfe_u32 v3, v0, 3, 1
    v_lshl_add_u32 v{vTG}, v3, 2, v{vTG}
    v_bfe_u32 v3, v0, 2, 1
    v_add_u32 v{vTG}, v3, v{vTG}
    v_lshl_add_u32 v{vTG}, v{vTG}, 6, v4
    v_add_u32 v{vTG}, s79, v{vTG}
    s_cmp_eq_u32 s39, 0
    s_cbranch_scc1 L_h_fsetup
    s_cmp_eq_u32 s39, 1
    s_cbranch_scc0 L_h_wfrag
    """)
    a(f"""
    s_lshl_b32 s40, s38, 6
    s_add_u32 s40, s40, {WS_DP}
    s_add_u32 s40, s40, s29
    s_add_u32 s41, s40, {8*16384}
    s_add_u32 s42, s40, {16*16384}
    s_lshr_b32 s64, s38, 3
    s_lshl_b32 s64, s64, 6
    s_bfe_u32 s65, s38, 0x20001
    s_lshl_b32 s65, s65, 2
    s_add_u32 s64, s64, s65
    s_and_b32 s65, s38, 1
    s_lshl_b32 s65, s65, 5
    s_add_u32 s64, s64, s65
    v_lshrrev_b32 v3, 2, v0
    v_and_b32 v4, 3, v0
    v_lshrrev_b32 v5, 1, v3
    v_lshlrev_b32 v{RT}, 14, v5
    v_and_b32 v5, 1, v3
    v_lshl_add_u32 v{RT}, v5, 12, v{RT}
    v_and_b32 v5, 1, v0
    v_lshlrev_b32 v5, 9, v5
    v_bfe_u32 v6, v0, 1, 1
    v_lshl_add_u32 v5, v6, 4, v5
    v_add_u32 v5, s64, v5
    v_lshl_add_u32 v{RT+2}, v5, 2, v{RT}
    v_lshl_add_u32 v{RT}, v4, 4, v{RT}
    v_lshrrev_b32 v6, 4, v0
    v_add_lshl_u32 v{RT+1}, v5, v6, 1
    v_cmp_gt_u32 vcc, 11, v3
    s_mov_b32 s44, -1
    s_mov_b32 s45, 0
    v_cndmask_b32 v{RT+5}, 0, -1, vcc
    v_mov_b32 v3, 0x7ffffff0
    v_cndmask_b32 v{RT+6}, v3, v{RT}, vcc
    s_mov_b32 s46, -1
    s_mov_b32 s47, 0x00000fff
    s_add_u32 s43, s29, {WS_AP}
    """)
    a(f"""
    buffer_load_ushort v{RT+3}, v{RT+1}, s[52:55], 0 offen
    {f'buffer_load_ushort v{RT+4}, v{RT+1}, s[48:51], 0 offen' if otouch == 1 else f'buffer_store_short v2, v{RT+1}, s[48:51], 0 offen' if otouch == 2 else ''}
    """)
    if touch:
        a('s_mov_b64 exec, s[46:47]')
        for k in (2, 1, 0):
            a(f'buffer_load_dword v{PFH}, v{RT}, s[56:59], s{40+k} offen sc1')
            if numa == 'probe':
                a(f's_add_u32 s66, s{40+k}, 8192\nbuffer_load_dword v{PFH}, v{RT}, s[56:59], s66 offen sc1')
            if k == 2:
                a('s_mov_b64 exec, -1')
    a('s_branch L_h_wfrag')
    a(f"""
    L_h_fsetup:
    v_bfe_u32 v3, v0, 4, 1
    v_and_b32 v4, 7, v0
    v_lshl_add_u32 v3, v3, 3, v4
    v_bfe_u32 v4, v0, 3, 1
    v_lshlrev_b32 v{vG}, 11, v4
    v_lshl_add_u32 v{vG}, v3, 4, v{vG}
    v_lshrrev_b32 v4, 1, v{vG}
    v_lshl_add_u32 v4, v6, 2, v4
    s_lshl_b32 s66, s3, 7
    buffer_load_dword v{vX}, v4, s[52:55], s66 offen
    v_lshl_add_u32 v{vG}, v6, 12, v{vG}
    """)
    if touch:
        a(f"""
        v_bfe_u32 v4, v0, 3, 2
        v_lshlrev_b32 v4, 14, v4
        {f'v_lshl_add_u32 v4, v6, 13, v4' if numa == 'probe' else ''}
        v_bfe_u32 v3, v0, 2, 1
        v_lshl_add_u32 v4, v3, 12, v4
        v_bfe_u32 v3, v0, 1, 1
        v_lshl_add_u32 v4, v3, 11, v4
        v_and_b32 v3, 1, v0
        v_lshl_add_u32 v4, v3, 7, v4
        s_add_u32 s66, s69, {WS_AP}
        s_add_u32 s66, s66, s29
        buffer_load_dword v{PFH}, v4, s[56:59], s66 offen sc1
        """)
    a(f"""
    v_lshlrev_b32 v{vPR}, 2, v0
    s_lshl_b32 s66, s3, 4
    s_add_u32 s66, s66, {L_ST}
    v_lshlrev_b32 v4, 3, v6
    v_add_u32 v{vSW}, s66, v4
    v_and_b32 v{vSR}, 7, v0
    v_lshl_add_u32 v{vSR}, v{vSR}, 4, v4
    v_bfe_u32 v3, v7, 2, 2
    v_lshlrev_b32 v3, 4, v3
    v_bfe_u32 v4, v7, 4, 1
    v_lshl_add_u32 v3, v4, 3, v3
    v_and_b32 v4, 3, v7
    v_lshl_add_u32 v3, v4, 1, v3
    v_lshl_add_u32 v3, v6, 6, v3
    s_lshl_b32 s66, s3, 7
    s_add_u32 s66, s66, {L_AB}
    v_add_u32 v{vAW}, s66, v3
    v_and_b32 v3, 1, v0
    v_lshlrev_b32 v3, 6, v3
    v_lshl_add_u32 v3, v5, 4, v3
    v_add_u32 v3, s66, v3
    v_bfe_u32 v4, v0, 1, 3
    v_mov_b32 v6, {L_ZERO}
    """)
    for t in range(4):
        a(f'v_cmp_eq_u32 vcc, {t}, v4\ns_nop 1\nv_cndmask_b32 v{vAR+t}, v6, v3, vcc')
    a(f"""
    v_and_b32 v3, 7, v0
    v_lshlrev_b32 v3, 4, v3
    v_lshl_add_u32 v{vDP}, v5, 7, v3
    v_mov_b32 v{t0+4}, 0x{f2u(1/512):08x}
    v_mov_b32 v{t0+5}, 0x{f2u(GELU_K0 * 0.044715):08x}
    v_lshrrev_b32 v3, 2, v0
    v_mul_u32_u24 v3, 2752, v3
    v_and_b32 v4, 3, v0
    v_lshl_add_u32 v{vGU}, v4, 4, v3
    L_h_wfrag:
    """)

    def self_prefetch(tag):
        if wself and hearly < 8:
            a(f's_cmp_lt_u32 s3, s77\ns_cbranch_scc1 L_h_pf{tag}')
            srd(72, 12, 4194304)
            a(f'buffer_load_dword v{FD+1}, v{vPF}, s[72:75], s78 offen {wpf}\nL_h_pf{tag}:')

    def stage_gu():
        a(f's_mul_i32 s64, s3, {64*2752}\ns_lshl_b32 s65, s38, 6\ns_add_u32 s64, s64, s65')
        for mat, sr in ((0, 40), (1, 44)):
            a('s_mov_b32 s68, s64')
            for i in range(4):
                a(f's_add_u32 m0, s79, {mat*4096 + i*1024}\ns_nop 0')
                a(f'buffer_load_dwordx4 v{vGU}, s[{sr}:{sr+3}], s68 offen {fpol} lds')
                if i < 3:
                    a(f's_add_u32 s68, s68, {16*2752}')

    def stage_down():
        srd(72, 20, 1409024)
        a('s_lshl_b32 s65, s38, 15\ns_lshl_b32 s66, s3, 7\ns_add_u32 s65, s65, s66')
        for i in range(4):
            a(f's_add_u32 m0, s79, {8192 + i*1024}\ns_nop 0')
            a(f'buffer_load_dwordx4 v{vTS}, s[72:75], s65 offen {fpol} lds')
            if i < 3:
                a('s_addk_i32 s65, 0x2000')

    def down_frags():
        for t in range(4):
            r = FDN + 4 * t
            a(f'v_xor_b32 v4, {32*t}, v{vSZ}\nv_add_u32 v4, v{vTD}, v4')
            a(f'ds_read_b64_tr_b16 v[{r}:{r+1}], v4 offset:8192')
            a(f'ds_read_b64_tr_b16 v[{r+2}:{r+3}], v4 offset:{8192+2048}')

    def part_write(D):
        a('s_mov_b32 exec_lo, 0x01010101\ns_mov_b32 exec_hi, 0x01010101')
        if ilv:
            for t in range(2):
                if t:
                    a('s_nop 0')
                for i in range(4):
                    a(f'ds_write2_b32 v{vPW}, v{D+4*t+i}, v{D+8+4*t+i} offset0:{L_PART//4 + 32*t + 2*i} offset1:{L_PART//4 + 32*t + 2*i + 1}')
        else:
            for t in range(4):
                a(f'ds_write_b128 v{vPW}, v[{D+4*t}:{D+4*t+3}] offset:{L_PART + (t>>1)*256 + (t&1)*64}')
                if t < 3:
                    a('s_nop 0')
        a('s_mov_b64 exec, -1\ns_waitcnt lgkmcnt(0)\ns_barrier')

    def part_read(R):
        for k in range(8):
            if ilv:
                a(f'ds_read_b64 v[{R+2*k}:{R+2*k+1}], v{vL8} offset:{L_PART + 512*k}')
            else:
                a(f'ds_read2st64_b32 v[{R+2*k}:{R+2*k+1}], v{vPR} offset0:{2*k} offset1:{2*k+1}')

    finish_epoch()
    a('s_cmp_eq_u32 s39, 0\ns_cbranch_scc1 L_h_fprep')
    self_prefetch('a')
    a('s_branch L_h_wo\nL_h_fprep:')
    a('''
    ''')

    srd(40, 16, 1409024)
    srd(44, 18, 1409024)
    stage_gu()
    if not dlate:
        stage_down()
    a(f"""
    s_lshr_b32 s52, s38, 1
    s_lshl_b32 s52, s52, 14
    s_and_b32 s66, s38, 1
    s_lshl_b32 s66, s66, 12
    s_add_u32 s52, s52, s66
    s_lshl_b32 s66, s3, 9
    s_add_u32 s52, s52, s66
    s_add_u32 s52, s52, {WS_DP}
    s_add_u32 s54, s52, 8192
    s_lshl_b32 s40, s3, 8
    s_add_u32 s40, s40, {WS_AP}
    s_add_u32 s40, s40, s29
    """)
    for k in range(1, 4):
        a(f's_add_u32 s{40+k}, s40, {16384*k}')
    for r in range(4):
        a(f'v_mov_b32 v{FB+r}, 0x3f803f80')
    a('s_waitcnt vmcnt(0)')
    self_prefetch('b')
    stamp(6)
    a(f'v_lshlrev_b32 v{vX0}, 16, v{vX}\nv_and_b32 v{vX1}, 0xffff0000, v{vX}')
    if not dlate:
        down_frags()
    for ks in range(2):
        a('s_waitcnt lgkmcnt(0)')
        for t in range(4):
            r = FA + 16 * ks + 4 * t
            off = (t >> 1) * 4096 + (t & 1) * 32 + ks * 1024
            a(f'ds_read_b64_tr_b16 v[{r}:{r+1}], v{vTG} offset:{off}')
            a(f'ds_read_b64_tr_b16 v[{r+2}:{r+3}], v{vTG} offset:{off+512}')
    a('s_waitcnt lgkmcnt(0)')
    CD = WA
    for ks in range(2):
        for t in range(4):
            c = '0' if ks == 0 else f'v[{CD+4*t}:{CD+4*t+3}]'
            a(f'v_mfma_f32_16x16x32_bf16 v[{CD+4*t}:{CD+4*t+3}], v[{FA+16*ks+4*t}:{FA+16*ks+4*t+3}], v[{FB}:{FB+3}], {c}')
    a('s_nop 7')
    part_write(CD)
    part_read(CD)
    a('s_waitcnt lgkmcnt(0)')
    a(f'v_pk_add_f32 v[{vCS}:{vCS+1}], v[{CD}:{CD+1}], v[{CD+2}:{CD+3}]')
    for k in range(2, 8):
        a(f'v_pk_add_f32 v[{vCS}:{vCS+1}], v[{vCS}:{vCS+1}], v[{CD+2*k}:{CD+2*k+1}]')
    stamp(2)
    a('''
    ''')
    a('L_h_wo:\ns_waitcnt vmcnt(0)\ns_barrier')
    stamp(4)
    srd(72, 12, 4194304)
    a(f"""
    s_lshl_b32 s66, s34, 1
    s_add_u32 s66, s66, s31
    s_lshl_b32 s66, s66, 7
    s_lshl_b32 s65, s28, 19
    s_add_u32 s65, s65, s66
    s_lshl_b32 s66, s3, 16
    s_add_u32 s65, s65, s66
    """)
    for i in range(8):
        a(f's_add_u32 m0, s79, {i*1024}\ns_nop 0')
        a(f'buffer_load_dwordx4 v{vTS}, s[72:75], s65 offen {wpol} lds')
        if i < 7:
            a('s_addk_i32 s65, 0x2000')
    if numa == 'probe':
        a(f"""
        s_lshl_b32 s60, s28, 7
        s_add_u32 s60, s60, {WS_PROBE + 1024}
        buffer_load_dword v3, v2, s[56:59], s60 offen sc1
        s_waitcnt vmcnt(0)
        v_readfirstlane_b32 s60, v3
        s_lshl_b32 s61, s36, 1
        s_add_u32 s61, s61, 1
        s_cmp_eq_u32 s60, s61
        s_cselect_b32 s29, 8192, 0
        """)
        for k in range(4):
            a(f's_add_u32 s{40+k}, s{40+k}, s29')
        a('s_add_u32 s52, s52, s29\ns_sub_u32 s54, s54, s29')
    a('s_waitcnt vmcnt(0)')
    stamp(1)
    a('v_bfe_u32 v3, v0, 3, 1\nv_lshlrev_b32 v3, 5, v3')
    for t in range(4):
        a(f'v_xor_b32 v4, {32*t}, v3\nv_add_u32 v4, v{vTW}, v4\nv_xor_b32 v5, {32*t ^ 64}, v3\nv_add_u32 v5, v{vTW}, v5')
        for ks in range(2):
            r = WA + 16 * ks + 4 * t
            a(f'ds_read_b64_tr_b16 v[{r}:{r+1}], v4 offset:{ks*1024}')
            a(f'ds_read_b64_tr_b16 v[{r+2}:{r+3}], v5 offset:{ks*1024 + 512}')
        if t & 1:
            a('s_waitcnt lgkmcnt(0)')
    a('''
    ''')
    a('L_h_b1:')
    if dbl and dblat == 'rdy':
        a('s_memrealtime s[90:91]')
    a(f's_sub_u32 s53, s32, {WS_LOCAL}')
    stamp(7)

    def b1fin(o):
        stamp(8)
        if dbl and dblat == 'b1':
            a('s_memrealtime s[90:91]')
        m0_, m1_, m2_ = G + o + 2, G + o + 6, G + o + 10
        a(f"""
        v_max3_f32 v{WD+2}, v{m0_}, v{m1_}, v{m2_}
        v_sub_f32 v{m0_}, v{m0_}, v{WD+2}
        v_sub_f32 v{m1_}, v{m1_}, v{WD+2}
        v_sub_f32 v{m2_}, v{m2_}, v{WD+2}
        v_exp_f32 v{m0_}, v{m0_}
        v_exp_f32 v{m1_}, v{m1_}
        v_exp_f32 v{m2_}, v{m2_}
        v_mul_f32 v{WD+2}, v{m0_}, v{m0_+1}
        v_pk_mul_f32 v[{WD}:{WD+1}], v[{G+o}:{G+o+1}], v[{m0_}:{m0_+1}] op_sel_hi:[1,0]
        v_fmac_f32 v{WD+2}, v{m1_}, v{m1_+1}
        v_pk_fma_f32 v[{WD}:{WD+1}], v[{G+o+4}:{G+o+5}], v[{m1_}:{m1_+1}], v[{WD}:{WD+1}] op_sel_hi:[1,0,1]
        v_fmac_f32 v{WD+2}, v{m2_}, v{m2_+1}
        v_pk_fma_f32 v[{WD}:{WD+1}], v[{G+o+8}:{G+o+9}], v[{m2_}:{m2_+1}], v[{WD}:{WD+1}] op_sel_hi:[1,0,1]
        v_rcp_f32 v{WD+2}, v{WD+2}
        s_nop 0
        v_pk_mul_f32 v[{WD}:{WD+1}], v[{WD}:{WD+1}], v[{WD+2}:{WD+3}] op_sel_hi:[1,0]
        """)
    if light:
        a(f"""
        v_min_u32 v3, 5, v0
        v_lshlrev_b32 v3, 10, v3
        s_mov_b32 s76, {local}
        s_mov_b64 exec, 63
        L_light:
        buffer_load_dword v4, v3, s[56:59], s32 offen sc1
        s_sub_u32 s76, s76, 1
        s_cbranch_scc1 L_light_out
        s_waitcnt vmcnt(0)
        v_xor_b32 v4, s37, v4
        v_cmp_{'ne' if light == 'all' else 'eq'}_u32_sdwa vcc, v4, v2 src0_sel:BYTE_0 src1_sel:DWORD
        s_cbranch_{'vccnz' if light == 'all' else 'vccz'} L_light
        L_light_out:
        s_mov_b64 exec, -1
        """)
    gather_pipe('L_b1', [(G + 4 * s, 4, f'v{vO1}, s[56:59], s32 offen offset:{s*OPREC}') for s in range(3)], 12, b1pipe,
                WD + 4, b1fin, fallback=((32, 53), local))

    def spread(src_lo):
        a(f'v_cvt_pk_bf16_f32 v{WB}, v{src_lo}, v{src_lo+1}\ns_nop 1')
        for j in range(1, 8):
            a(f'v_mov_b32_dpp v{WB+j}, v{WB} row_shl:{j} {DPP}')
    spread(WD)
    for t in range(4):
        a(f'v_mfma_f32_16x16x32_bf16 v[{WD+4*t}:{WD+4*t+3}], v[{WA+4*t}:{WA+4*t+3}], v[{WB}:{WB+3}], 0')
    for t in range(4):
        a(f'v_mfma_f32_16x16x32_bf16 v[{WD+4*t}:{WD+4*t+3}], v[{WA+16+4*t}:{WA+16+4*t+3}], v[{WB+4}:{WB+7}], v[{WD+4*t}:{WD+4*t+3}]')
    a('s_mov_b32 exec_lo, 0x01010101\ns_mov_b32 exec_hi, 0x01010101\ns_nop 2')
    for t in range(4):
        a(f'ds_write_b128 v{vPWw}, v[{WD+4*t}:{WD+4*t+3}] offset:{L_PART2 + 64*t}')
        if t < 3:
            a('s_nop 0')
    PR = G
    a(f"""
    s_mov_b64 exec, -1
    s_cmp_lt_u32 s3, {6 if numa is not None else 7}
    s_waitcnt lgkmcnt(0)
    s_barrier
    s_cbranch_scc1 L_w_done
    """)
    for k in range(8):
        a(f'ds_read_b64 v[{PR+2*k}:{PR+2*k+1}], v{vL8} offset:{L_PART2+512*k}')
    for k in range(4):
        a(f's_waitcnt lgkmcnt({6-2*k})\nv_pk_add_f32 v[{PR+4*k}:{PR+4*k+1}], v[{PR+4*k}:{PR+4*k+1}], v[{PR+4*k+2}:{PR+4*k+3}]')
        if k & 1:
            a(f'v_pk_add_f32 v[{PR+4*k-4}:{PR+4*k-3}], v[{PR+4*k-4}:{PR+4*k-3}], v[{PR+4*k}:{PR+4*k+1}]')
    a(f"""
    v_pk_add_f32 v[{WB}:{WB+1}], v[{PR}:{PR+1}], v[{PR+8}:{PR+9}]
    v_and_or_b32 v{WB}, v{WB}, v{vMK}, s37
    v_and_or_b32 v{WB+1}, v{WB+1}, v{vMK}, s37
    buffer_store_dwordx2 v[{WB}:{WB+1}], v{vAP}, s[56:59], s30 offen sc1
    """)
    stamp(9)
    a(f"""
    L_w_done:
    {'s_barrier' if wbar else ''}
    """)
    if stamps:
        a('s_cmp_lg_u32 s3, 7\ns_cbranch_scc1 L_w_nostamp')
        dump_stamps([1, 7, 8, 9, 4], [14, 7, 8, 9, 15])
        a('L_w_nostamp:')
    a(f"""
    s_cmp_eq_u32 s39, 1
    s_cbranch_scc1 L_rrole
    s_cmp_lg_u32 s39, 0
    s_cbranch_scc1 L_end
    """)
    if dlate:
        stage_down()
        a('s_waitcnt vmcnt(0)')
        down_frags()
    a('''
    ; h = x + sum of the eight group partials; gate / up on raw h, LayerNorm applied afterwards from the moments;
    ''')
    D6, ONES = WA, WA + 4
    for r in range(4):
        a(f'v_mov_b32 v{ONES+r}, 0x3f803f80')
    gather_sticky('L_b2', [(FG + 4 * k, f'v{vG}, s[56:59], s{40+k} offen') for k in range(4)], FD)
    stamp(3)
    a(f"""
    v_pk_add_f32 v[{FG}:{FG+1}], v[{FG}:{FG+1}], v[{FG+4}:{FG+5}]
    v_pk_add_f32 v[{FG+2}:{FG+3}], v[{FG+2}:{FG+3}], v[{FG+6}:{FG+7}]
    v_pk_add_f32 v[{FG+8}:{FG+9}], v[{FG+8}:{FG+9}], v[{FG+12}:{FG+13}]
    v_pk_add_f32 v[{FG+10}:{FG+11}], v[{FG+10}:{FG+11}], v[{FG+14}:{FG+15}]
    v_pk_add_f32 v[{FG}:{FG+1}], v[{FG}:{FG+1}], v[{FG+8}:{FG+9}]
    v_pk_add_f32 v[{FG+2}:{FG+3}], v[{FG+2}:{FG+3}], v[{FG+10}:{FG+11}]
    s_nop 1
    v_permlane32_swap_b32 v{FG}, v{FG+2}
    v_permlane32_swap_b32 v{FG+1}, v{FG+3}
    v_pk_add_f32 v[{FG}:{FG+1}], v[{FG}:{FG+1}], v[{vX0}:{vX1}]
    v_pk_add_f32 v[{FG}:{FG+1}], v[{FG}:{FG+1}], v[{FG+2}:{FG+3}]
    """)
    spread(FG)
    for ks in range(2):
        b = f'v[{FB+4*ks}:{FB+4*ks+3}]'
        a(f'v_mfma_f32_16x16x32_bf16 v[{FD+16}:{FD+19}], {b}, {b}, ' + ('0' if ks == 0 else f'v[{FD+16}:{FD+19}]'))
        a(f'v_mfma_f32_16x16x32_bf16 v[{D6}:{D6+3}], v[{ONES}:{ONES+3}], {b}, ' + ('0' if ks == 0 else f'v[{D6}:{D6+3}]'))
        for t in ((0, 2, 1, 3) if ilv else range(4)):
            c = '0' if ks == 0 else f'v[{FD+4*t}:{FD+4*t+3}]'
            a(f'v_mfma_f32_16x16x32_bf16 v[{FD+4*t}:{FD+4*t+3}], v[{FA+16*ks+4*t}:{FA+16*ks+4*t+3}], {b}, {c}')
    a(f"""
    s_mov_b32 exec_lo, 1
    s_mov_b32 exec_hi, 0x100
    s_nop 1
    ds_write2_b32 v{vSW}, v{D6}, v{FD+16} offset0:0 offset1:1
    """)
    part_write(FD)
    stamp(5)
    a(f'ds_read_b64 v[{t0}:{t0+1}], v{vSR} offset:{L_ST}')
    part_read(FG)
    CS = FG
    a(f"""
    s_waitcnt lgkmcnt(8)
    v_add_f32_dpp v{t0}, v{t0}, v{t0} row_ror:4 {DPP}
    v_add_f32_dpp v{t0+1}, v{t0+1}, v{t0+1} row_ror:4 {DPP}
    s_waitcnt lgkmcnt(6)
    v_add_f32_dpp v{t0}, v{t0}, v{t0} row_ror:2 {DPP}
    v_add_f32_dpp v{t0+1}, v{t0+1}, v{t0+1} row_ror:2 {DPP}
    v_pk_add_f32 v[{FG}:{FG+1}], v[{FG}:{FG+1}], v[{FG+2}:{FG+3}]
    v_add_f32_dpp v{t0}, v{t0}, v{t0} row_ror:1 {DPP}
    v_add_f32_dpp v{t0+1}, v{t0+1}, v{t0+1} row_ror:1 {DPP}
    s_waitcnt lgkmcnt(4)
    v_pk_add_f32 v[{FG+4}:{FG+5}], v[{FG+4}:{FG+5}], v[{FG+6}:{FG+7}]
    v_pk_mul_f32 v[{t0}:{t0+1}], v[{t0}:{t0+1}], v[{t0+4}:{t0+5}] op_sel_hi:[1,0]
    s_waitcnt lgkmcnt(2)
    v_pk_add_f32 v[{FG+8}:{FG+9}], v[{FG+8}:{FG+9}], v[{FG+10}:{FG+11}]
    v_fma_f32 v{t0+1}, -v{t0}, v{t0}, v{t0+1}
    v_pk_add_f32 v[{FG}:{FG+1}], v[{FG}:{FG+1}], v[{FG+4}:{FG+5}]
    v_max_f32 v{t0+1}, 0, v{t0+1}
    s_waitcnt lgkmcnt(0)
    v_pk_add_f32 v[{FG+12}:{FG+13}], v[{FG+12}:{FG+13}], v[{FG+14}:{FG+15}]
    v_add_f32 v{t0+1}, 0x{f2u(1e-5):08x}, v{t0+1}
    v_pk_fma_f32 v[{FG}:{FG+1}], v[{vCS}:{vCS+1}], v[{t0}:{t0+1}], v[{FG}:{FG+1}] op_sel_hi:[1,0,1] neg_lo:[1,0,0] neg_hi:[1,0,0]
    v_rsq_f32 v{t0+1}, v{t0+1}
    v_pk_add_f32 v[{FG+8}:{FG+9}], v[{FG+8}:{FG+9}], v[{FG+12}:{FG+13}]
    v_pk_add_f32 v[{FG}:{FG+1}], v[{FG}:{FG+1}], v[{FG+8}:{FG+9}]
    v_pk_mul_f32 v[{FG}:{FG+1}], v[{FG}:{FG+1}], v[{t0}:{t0+1}] op_sel:[0,1] op_sel_hi:[1,1]
    v_mul_f32 v{FG+4}, v{FG}, v{FG}
    v_mul_f32 v{FG+1}, v{FG+1}, v{FG}
    v_fmaak_f32 v{FG+4}, v{FG+4}, v{t0+5}, 0x{f2u(GELU_K0):08x}
    v_mul_f32 v{FG+4}, v{FG+4}, v{FG}
    v_exp_f32 v{FG+4}, v{FG+4}
    s_nop 0
    v_add_f32 v{FG+4}, 1.0, v{FG+4}
    v_rcp_f32 v{FG+4}, v{FG+4}
    s_nop 0
    v_mul_f32 v{FG+1}, v{FG+1}, v{FG+4}
    v_cvt_pk_bf16_f32 v{FG+1}, v{FG+1}, v{FG+1}
    ds_write_b16 v{vAW}, v{FG+1}
    """)
    for t in range(4):
        a(f'ds_read_b128 v[{CS+4*t}:{CS+4*t+3}], v{vAR+t}')
    for t in range(4):
        c = '0' if t == 0 else f'v[{FD}:{FD+3}]'
        a(f's_waitcnt lgkmcnt({3-t})')
        a(f'v_mfma_f32_16x16x32_bf16 v[{FD}:{FD+3}], v[{FDN+4*t}:{FDN+4*t+3}], v[{CS+4*t}:{CS+4*t+3}], {c}')
    a('s_mov_b32 exec_lo, 0x00ff00ff\ns_mov_b32 exec_hi, 0x00ff00ff\ns_nop 5')
    for r in range(4):
        a(f'v_and_or_b32 v{FD+r}, v{FD+r}, v{vMK}, s37')
    if numa is not None:
        a(f'buffer_store_dwordx4 v[{FD}:{FD+3}], v{vDP}, s[56:59], s54 offen sc1')
    a(f'buffer_store_dwordx4 v[{FD}:{FD+3}], v{vDP}, s[56:59], s52 offen sc1')
    stamp(4)
    if stamps:
        a('s_cmp_lg_u32 s3, 0\ns_cbranch_scc1 L_end')
        dump_stamps([6, 2, 3, 5, 4], [6, 2, 3, 4, 5])
    a('s_endpgm')

    a('''
    ''')
    a(f'L_rrole:\ns_waitcnt vmcnt(0)\nv_and_b32 v{RT+5}, s37, v{RT+5}')
    a(f's_mov_b32 s58, {WS_END}')
    for r in range(4):
        a(f'v_mov_b32 v{RG+r}, 0\nv_mov_b32 v{RG+8+r}, 0')
    gather_sticky('L_rh', [(RG, f'v{RT+2}, s[56:59], s43 offen')], RG + 12, init=['s[44:45]'])
    a(f"""
    s_cmp_lg_u32 s38, 0
    s_cbranch_scc1 L_r_noepoch
    s_mov_b64 exec, 1
    v_mov_b32 v3, s36
    buffer_store_dword v3, v2, s[56:59], 0 offen sc1
    L_r_noepoch:
    s_mov_b64 exec, -1
    """)
    stamp(1)
    if dbl and dblat == 'ap':
        a('s_memrealtime s[90:91]')

    def rreduce():
        a(f'''
        v_permlane32_swap_b32 v{RG}, v{RG+2}
        v_permlane32_swap_b32 v{RG+1}, v{RG+3}
        s_nop 0
        v_pk_add_f32 v[{RG}:{RG+1}], v[{RG}:{RG+1}], v[{RG+2}:{RG+3}]
        s_nop 1
        v_permlane16_swap_b32 v{RG}, v{RG+1}
        s_nop 0
        v_add_f32 v{RG}, v{RG}, v{RG+1}
        s_nop 1
        v_add_f32_dpp v{RG}, v{RG}, v{RG} row_ror:8 {DPP}
        s_nop 1
        v_add_f32_dpp v{RG}, v{RG}, v{RG} row_ror:4 {DPP}
        ''')
    rreduce()
    a(f'''
    v_lshlrev_b32 v{RT+3}, 16, v{RT+3}
    v_add_f32 v{RT+3}, v{RT+3}, v{RG}
    v_cvt_pk_bf16_f32 v{RT+3}, v{RT+3}, v{RT+3}
    v_lshlrev_b32 v{RT+3}, 16, v{RT+3}
    ''')
    if cmode == 'sticky':
        gather_sticky('L_rc', [(RG + 4 * k, f'v{RT}, s[56:59], s{40+k} offen') for k in range(3)], RG + 12,
                      init=[-1, -1, 's[46:47]'])
        stamp(2)
        a(f'''
        v_pk_add_f32 v[{RG}:{RG+1}], v[{RG}:{RG+1}], v[{RG+4}:{RG+5}]
        v_pk_add_f32 v[{RG+2}:{RG+3}], v[{RG+2}:{RG+3}], v[{RG+6}:{RG+7}]
        v_pk_add_f32 v[{RG}:{RG+1}], v[{RG}:{RG+1}], v[{RG+8}:{RG+9}]
        v_pk_add_f32 v[{RG+2}:{RG+3}], v[{RG+2}:{RG+3}], v[{RG+10}:{RG+11}]
        s_nop 1
        ''')
    else:
        cpipe = int(cmode)
        CG = 24

        def cfin(o):
            stamp(2)
            a(f'''
            v_pk_add_f32 v[{RG}:{RG+1}], v[{CG+o}:{CG+o+1}], v[{CG+o+4}:{CG+o+5}]
            v_pk_add_f32 v[{RG+2}:{RG+3}], v[{CG+o+2}:{CG+o+3}], v[{CG+o+6}:{CG+o+7}]
            v_pk_add_f32 v[{RG}:{RG+1}], v[{RG}:{RG+1}], v[{CG+o+8}:{CG+o+9}]
            v_pk_add_f32 v[{RG+2}:{RG+3}], v[{RG+2}:{RG+3}], v[{CG+o+10}:{CG+o+11}]
            ''')
        gather_pipe('L_rc', [(CG + 4 * k, 4, f'v{RT + (6 if k == 2 else 0)}, s[56:59], s{40+k} offen') for k in range(3)], 12, cpipe, RG + 4,
                    cfin, lanes=[None, None, RT + 5])
        a('s_nop 1')
    rreduce()
    a(f'''
    v_add_f32 v{RG}, v{RG}, v{RT+3}
    v_cvt_pk_bf16_f32 v{RG}, v{RG}, v{RG}
    ''')
    if addt:
        a(f'''
        s_memrealtime s[92:93]
        s_waitcnt lgkmcnt(0)
        L_addt:
        s_memrealtime s[98:99]
        s_waitcnt lgkmcnt(0)
        s_sub_u32 s95, s98, s92
        s_cmp_lt_u32 s95, {addt}
        s_cbranch_scc1 L_addt
        ''')
    if dbl:
        a(f'''
        s_memrealtime s[92:93]
        s_waitcnt lgkmcnt(0)
        s_sub_u32 s94, {'s92' if dblat == 'c' else 's90'}, s96
        s_mul_i32 s94, s94, {dbl}
        L_dbl:
        s_memrealtime s[98:99]
        s_waitcnt lgkmcnt(0)
        s_sub_u32 s95, s98, s92
        s_cmp_lt_u32 s95, s94
        s_cbranch_scc1 L_dbl
        ''')
    if spin:
        a(f's_mov_b32 s76, {spin}\nL_spin:\ns_nop 15\ns_nop 15\ns_sub_u32 s76, s76, 1\ns_cbranch_scc0 L_spin')
    a(f'''
    s_mov_b32 exec_lo, 0x000f000f
    s_mov_b32 exec_hi, 0x000f000f
    buffer_store_short v{RG}, v{RT+1}, s[48:51], 0 offen {outpol}
    ''')
    stamp(3)
    if dbg:
        a('''
        s_cmp_lg_u32 s38, 0
        s_cbranch_scc1 L_nodbg
        s_memtime s[90:91]
        s_waitcnt lgkmcnt(0)
        s_mov_b64 exec, 1
        ''')
        for k in range(1, 4):
            a(f's_sub_u32 s77, s{80+2*k}, s80\nv_mov_b32 v6, s77\nglobal_store_dword v2, v6, s[24:25] offset:{4*k}')
        a('s_sub_u32 s77, s90, s88\nv_mov_b32 v6, s77\nglobal_store_dword v2, v6, s[24:25] offset:16\nL_nodbg:')
    if stamps:
        a('s_cmp_lg_u32 s3, 0\ns_cbranch_scc1 L_end')
        dump_stamps([1, 2, 3])
    a('L_end:\ns_endpgm')
    nv = 168
    assert nv <= 168
    return wrap(a.text(), 256, 576, LDS_BYTES, nv, design=True)


if __name__ == '__main__':
    cfgs = eval(open(sys.argv[1]).read())
    for k, c in cfgs.items():
        c = dict(c)
        al = c.pop('al', False)
        text = gen(**c)
        if al:
            from align8 import align
            text, nf, nl = align(text.replace('PFOFF', '77'))
            text = text.replace('offset:77\n', 'offset:PFOFF\n', 1)
            print(k, 'widened', nf, 'left', nl)
        if 'PFOFF' in text:
            import subprocess
            open('pass1.s', 'w').write(text.replace('PFOFF', '0'))
            subprocess.run(['clang', '-x', 'assembler', '-target', 'amdgcn-amd-amdhsa', '-mcpu=gfx950', '-c', 'pass1.s', '-o', 'pass1.o'], check=True)
            sym = {l.split()[-1]: int(l.split()[0], 16) for l in subprocess.run(['llvm-objdump', '-t', 'pass1.o'], capture_output=True, text=True).stdout.splitlines() if ' .text' in l and 'L_' in l}
            stride = 21 if sym['L_end'] - sym['L_pcbase'] < 575 * 22 else 22 if sym['L_end'] - sym['L_pcbase'] < 575 * 23 else 23
            text = text.replace('vcc, v0, 21,', f'vcc, v0, {stride},').replace('one byte every 21', f'one byte every {stride}')
            off = sym['L_end'] - sym['L_pcbase'] - 575 * stride
            assert 0 <= off <= 4095, off
            print(k, 'prefetch offset', off, 'first block ends at', hex(sym['L_first_end']))
            text = text.replace('PFOFF', str(off))
        open(f'{k}.s', 'w').write(text)
    print(' '.join(f'{k}.s' for k in cfgs))
    print(json.dumps([f'work/{k}.s' for k in cfgs]))
```
